```python
import torch

def _softmax(x, axis=-1):
    return torch.softmax(x, dim=axis)
def _gelu(x):
    return torch.nn.functional.gelu(x, approximate="tanh")
def _silu(x):
    return torch.nn.functional.silu(x)
def _sigmoid(x):
    return torch.sigmoid(x)
def _layernorm(x, axis=-1, eps=1e-5):
    m = x.mean(dim=axis, keepdim=True)
    v = x.var(dim=axis, keepdim=True, unbiased=False)
    return (x - m) / torch.sqrt(v + eps)
def _scatter_add(tgt, idx, src, axis=0):
    return tgt.clone().index_add_(axis, idx, src)
def _segment_sum(src, seg, n):
    out = torch.zeros((n,) + src.shape[1:], dtype=src.dtype)
    return out.index_add_(0, seg, src)
def _pad(x, pw):
    flat = tuple(v for pair in reversed(pw) for v in pair)
    return torch.nn.functional.pad(x, flat)

kernel_name = 'concat_heads__grouped_kv_mqa__ssm_conv_h3__prompt'

def setup_inputs():

    _w = (lambda a: (lambda t: t.to(torch.bfloat16) if t.is_floating_point() else t)(torch.as_tensor(a)))
    def _A_setup():
        B, S, D, H = 1, 2048, 576, 32
        Dh = D // H
        return {
            "x": _w((lambda *s: torch.randn(*s, dtype=torch.bfloat16) * 0.05)(B, S, D)),
            "wq": _w((lambda *s: torch.randn(*s, dtype=torch.bfloat16) * 0.8)(D, H * Dh)),
            "wk": _w((lambda *s: torch.randn(*s, dtype=torch.bfloat16) * 0.8)(D, Dh)),
            "wv": _w((lambda *s: torch.randn(*s, dtype=torch.bfloat16) * 0.05)(D, Dh)),
            "wo": _w((lambda *s: torch.randn(*s, dtype=torch.bfloat16) * 0.05)(H * Dh, D)),
        }
    _A_in = _A_setup()

    def _B_setup():
        B, S, D = 1, 2048, 576
        ks = 4
        return {
            "q": _w((lambda *s: torch.randn(*s, dtype=torch.bfloat16) * 0.05)(B, S, D)),
            "k": _w((lambda *s: torch.randn(*s, dtype=torch.bfloat16) * 0.2)(B, S, D)),
            "v": _w((lambda *s: torch.randn(*s, dtype=torch.bfloat16) * 0.2)(B, S, D)),
            "shift_k": _w((lambda *s: torch.randn(*s, dtype=torch.bfloat16) * 0.2)(D, ks) * 0.5),
            "ssm_k": _w((lambda *s: torch.randn(*s, dtype=torch.bfloat16) * 0.8)(D, S) * (1.0 / S ** 0.5)),
            "ssm_D": _w((lambda *s: torch.randn(*s, dtype=torch.bfloat16) * 0.2)(D)),
        }
    _B_in = _B_setup()

    return {
        "A_x": _A_in["x"],
        "A_wq": _A_in["wq"],
        "A_wk": _A_in["wk"],
        "A_wv": _A_in["wv"],
        "A_wo": _A_in["wo"],
        "B_q": _B_in["q"],
        "B_k": _B_in["k"],
        "B_v": _B_in["v"],
        "B_shift_k": _B_in["shift_k"],
        "B_ssm_k": _B_in["ssm_k"],
        "B_ssm_D": _B_in["ssm_D"],
    }

def reference(A_x, A_wq, A_wk, A_wv, A_wo, B_q, B_k, B_v, B_shift_k, B_ssm_k, B_ssm_D):
    def _A_ref(x, wq, wk, wv, wo):
        B, S, D = x.shape
        H = 32
        Dh = D // H
        q = (lambda x, *d: x.permute(*d))((x @ wq).reshape(B, S, H, Dh), 0, 2, 1, 3)
        k = x @ wk
        v = x @ wv
        scores = torch.einsum("bhqd,bkd->bhqk", q, k) * (Dh ** -0.5)
        p = _softmax(scores, axis=-1)
        o = torch.einsum("bhqk,bkd->bhqd", p, v)
        return (lambda x, *d: x.permute(*d))(o, 0, 2, 1, 3).reshape(B, S, H * Dh) @ wo

    def _B_ref(q, k, v, shift_k, ssm_k, ssm_D):
        B, S, D = q.shape
        ks = shift_k.shape[-1]
        k_pad = _pad(k, ((0, 0), (ks - 1, 0), (0, 0)))
        k_shift = torch.zeros_like(k)
        for t in range(ks):
            k_shift = k_shift + k_pad[:, t:t + S, :] * shift_k[:, ks - 1 - t][None, None, :]
        kv = k_shift * v
        L = 2 * S
        kv_pad = _pad(kv, ((0, 0), (0, S), (0, 0)))
        kf_pad = _pad(ssm_k, ((0, 0), (0, S)))
        kv_f = (lambda x, axes=(-2,-1): torch.fft.rfft2(x.float(), dim=axes))(kv_pad[:, None, :, :], axes=(1, 2))
        kf_f = (lambda x, axes=(-2,-1): torch.fft.rfft2(x.float(), dim=axes))(kf_pad[:, None, :], axes=(1, 2))
        kf_f = (lambda x, *d: x.permute(*d))(kf_f, 1, 2, 0)
        y_f = kv_f * kf_f[None, :, :, :]
        y = (lambda x, s, axes=(-2,-1): torch.fft.irfft2(x, s=s, dim=axes).to(torch.bfloat16))(y_f, (1, L), axes=(1, 2))[:, 0, :S, :]
        y = y + kv * ssm_D[None, None, :]
        return q * y

    a = _A_ref(A_x, A_wq, A_wk, A_wv, A_wo)
    b = _B_ref(B_q, B_k, B_v, B_shift_k, B_ssm_k, B_ssm_D)
    return torch.concatenate([a, b], axis=-1)
```

```python
import re

class Asm:
    def __init__(self):
        self.lines = []
        self.nlabel = 0
        self.lgkm = None
    def __call__(self, s):
        for l in s.split("\n"):
            l = l.strip()
            if l:
                self.lines.append(l)
    def label(self, name):
        self.lines.append(name + ":")
    def newlabel(self, base="L"):
        self.nlabel += 1
        return f"{base}_{self.nlabel}"
    def c(self, s):
        self.lines.append("; " + s)
    def nop(self, n):
        while n > 0:
            k = min(n, 16)
            self(f"s_nop {k-1}")
            n -= k
    def q_start(self, init=()):
        self.lgkm = list(init)
    def ds(self, s, tag):
        self(s)
        self.lgkm.append(tag)
        assert len(self.lgkm) <= 15 or True
    def need(self, *tags):
        idx = -1
        for t in tags:
            if t in self.lgkm:
                idx = max(idx, len(self.lgkm) - 1 - self.lgkm[::-1].index(t))
        if idx < 0:
            return
        n = len(self.lgkm) - 1 - idx
        assert n <= 15, n
        self(f"s_waitcnt lgkmcnt({n})")
        self.lgkm = self.lgkm[idx + 1:]
    def text(self):
        out = []
        for l in self.lines:
            if l.endswith(":") or l.startswith(";") or l.startswith("."):
                out.append(l)
            else:
                out.append("    " + l)
        return "\n".join(out) + "\n"

_reg = re.compile(r"^(-?)(?:abs\()?([vsa])(?:(\d+)|\[(\d+):(\d+)\])\)?$")
def regs(op):
    op = op.strip()
    if op in ("vcc",): return {("s", "vcc")}
    if op in ("exec",): return {("s", "exec")}
    if op == "m0": return {("s", "m0")}
    m = _reg.match(op)
    if not m: return set()
    f = m.group(2)
    if m.group(3) is not None:
        return {(f, int(m.group(3)))}
    return {(f, i) for i in range(int(m.group(4)), int(m.group(5)) + 1)}

TRANS = ("v_exp_f32", "v_log_f32", "v_rcp_f32", "v_rsq_f32", "v_sqrt_f32", "v_sin_f32", "v_cos_f32")
def parse(line):
    line = line.split(";")[0].strip()
    parts = line.split(None, 1)
    op = parts[0]
    ops = []
    if len(parts) > 1:
        depth = 0; cur = ""
        for ch in parts[1]:
            if ch in "[(": depth += 1
            if ch in "])": depth -= 1
            if ch == "," and depth == 0:
                ops.append(cur.strip()); cur = ""
            else: cur += ch
        ops.append(cur.strip())
    ops = [o.split()[0] if o else o for o in ops]
    return op, ops

def rw(op, ops, line):
    W = set(); R = set()
    if op.startswith("v_mfma"):
        W = regs(ops[0]); R = regs(ops[1]) | regs(ops[2]) | regs(ops[3]); return W, R, "mfma"
    if op.startswith("v_cmp"):
        W = regs(ops[0]); R = set().union(*[regs(o) for o in ops[1:]]); return W, R, "valu"
    if op.startswith("v_permlane") and "swap" in op:
        W = regs(ops[0]) | regs(ops[1]); R = set(W); return W, R, "permlane"
    if op in ("v_readfirstlane_b32", "v_readlane_b32"):
        W = regs(ops[0]); R = regs(ops[1]); return W, R, "readlane"
    if op.startswith("v_"):
        W = regs(ops[0]); rest = ops[1:]
        if op.startswith(("v_add_co", "v_sub_co", "v_addc_co", "v_subb_co")):
            W |= regs(ops[1]); rest = ops[2:]
        R = set().union(*[regs(o) for o in rest]) if rest else set()
        if op.startswith(("v_fmac", "v_dot2c", "v_pk_fmac")): R |= regs(ops[0])
        if "dpp" in op or "row_" in line or "quad_perm" in line: return W, R | W, "dpp"
        return W, R, ("trans" if op.replace("_e32", "").replace("_e64", "") in TRANS else "valu")
    if op.startswith("ds_read") or op.startswith("ds_add_rtn") or op.startswith("ds_bpermute") or op.startswith("ds_swizzle"):
        W = regs(ops[0]); R = set().union(*[regs(o) for o in ops[1:]]); return W, R, "ds"
    if op.startswith("ds_"):
        R = set().union(*[regs(o) for o in ops]); return W, R, "ds"
    if op.startswith("buffer_load") or op.startswith("global_load"):
        if " lds" in line:
            R = set().union(*[regs(o) for o in ops]) | {("s", "m0")}; return W, R, "vmem_lds"
        W = regs(ops[0]); R = set().union(*[regs(o) for o in ops[1:]]); return W, R, "vmem"
    if op.startswith("buffer_store") or op.startswith("global_store"):
        R = set().union(*[regs(o) for o in ops]); return W, R, "vstore"
    if op.startswith("s_"):
        if op in ("s_nop", "s_waitcnt", "s_barrier", "s_sleep", "s_branch", "s_endpgm", "s_setprio") or op.startswith("s_cbranch"):
            return W, R, "sctl"
        if op.startswith("s_cmp"):
            R = set().union(*[regs(o) for o in ops]); return W, R, "salu"
        W = regs(ops[0]); R = set().union(*[regs(o) for o in ops[1:]]) if len(ops) > 1 else set()
        if "saveexec" in op: W |= {("s", "exec")}
        return W, R, "salu"
    return W, R, "other"

def mfma_passes(op):
    if "32x32" in op: return 8
    if "16x16" in op: return 4
    return 16

def check(lines, window=24):
    hist = []
    probs = []
    for ln, line in enumerate(lines):
        if line.endswith(":") or line.startswith(";") or line.startswith("."):
            continue
        op, ops = parse(line)
        W, R, kind = rw(op, ops, line)
        dist = 0
        for (pop, pW, pR, pkind, pline, st, pops) in reversed(hist):
            need = 0
            isvalu = kind in ("valu", "trans", "dpp", "permlane", "readlane")
            pvalu = pkind in ("valu", "trans", "dpp", "permlane", "readlane")
            vW = {r for r in pW if r[0] in "va"}
            sW = {r for r in pW if r[0] == "s"}
            if pvalu and kind == "mfma" and vW & R: need = max(need, 2)
            if pkind == "mfma":
                p = mfma_passes(pop)
                d = {4: 8, 8: 12, 16: 20}[p]
                if kind == "mfma":
                    ab = regs(ops[1]) | regs(ops[2]); cc = regs(ops[3])
                    if pW & ab: need = max(need, d)
                    if pW & cc and (pW != cc or mfma_passes(op) != p): need = max(need, {4: 6, 8: 10, 16: 18}[p])
                    if pW & W and not (pW & cc): need = max(need, 0)
                elif (isvalu and (pW & (R | W))) or (kind in ("ds", "vmem", "vstore", "vmem_lds") and (pW & (R | W))):
                    need = max(need, d)
                if isvalu and (regs(pops[3]) & W): need = max(need, {4: 3, 8: 7, 16: 15}[p])
            if pkind == "trans" and isvalu and kind != "trans" and vW & R: need = max(need, 1)
            if pkind == "trans" and kind == "trans" and vW & R: need = max(need, 1)
            if pvalu and kind == "readlane" and vW & R: need = max(need, 1)
            if pvalu and kind in ("permlane", "dpp") and vW & R: need = max(need, 2)
            if pvalu and sW and isvalu and (sW & R): need = max(need, 2)
            if pvalu and sW and kind in ("vmem", "vstore", "vmem_lds") and (sW & R): need = max(need, 5)
            if pkind == "salu" and ("s", "m0") in pW and kind == "vmem_lds": need = max(need, 1)
            if pkind == "vstore" and ("x4" in pop or "x3" in pop) and isvalu and (regs(pops[0]) & W): need = max(need, 2)
            if need > dist:
                probs.append(f"line {ln}: '{line}' needs {need} states after '{pline}' (has {dist})")
            dist += st
            if dist > window: break
        st = 1
        if op == "s_nop": st = int(ops[0]) + 1
        hist.append((op, W, R, kind, line, st, ops))
        if len(hist) > 64: hist.pop(0)
        if op in ("s_branch", "s_endpgm"): hist = []
    return probs
```

```python
import sys, math, struct
from asmlib import Asm, check

NAME = "concat_heads__grouped_kv_mqa__ssm_conv_h3__prompt"
STAMPS = "--stamps" in sys.argv
FORCE_FB = "--force-fb" in sys.argv

LDS_X = 0
LDS_WQ = 73728
LDS_WK = 129024
LDS_RING = 73728
LDS_B3 = 135168
LDS_WOT = 147456
LDS_MISC = 156672
LDS_TOTAL = 163840
CHUNK = 20480
CONV_SZ = 22784
(C_X, C_WK, C_S0, C_S1, C_S2, C_KVJ, C_Q0, C_Q1, C_Q2, KV_READY, NONCE, QN2, KN0, KN1, C_KVP, C_B1P,
 C_CVP, C_CONV, C_O, FB, WO_READY) = range(21)
PROG = 32
WS_KV = 0
WS_U = 0x40000
WS_W = 0x280000
WS_O = 0x4C0000
FL_KV = 0x700000
FL_B1 = 0x704000
FL_CV = 0x70C000
FL_O = 0x714000
WS_ST = 0x780000
WS_SIZE = 0x800000

def fbits(x): return struct.unpack("<I", struct.pack("<f", x))[0]
QSCALE = math.log2(math.e) / math.sqrt(18.0)

sWG, sT3, sWAVE, sRB, sCB, sJOB, sBUD, sNON = 2, 3, 4, 5, 6, 7, 8, 9
sA, sB_, sC, sD, sE, sF, sG, sH, sI, sJ = range(10, 20)
SWS = 20; SR1 = 24; SR2 = 28; SR3 = 32
pX, pWQ, pWK, pWV, pWO, pQ, pK, pV, pSH, pSK, pDD, pOUT, pDBG, pWS = range(36, 64, 2)
SR4 = 64; SR5 = 68
sL0, sL1, sL2, sL3, sL4, sL5, sL6, sL7 = range(72, 80)
sST = 80

a = Asm()
def srd(r): return f"s[{r}:{r+3}]"
def vr(r, n=1): return f"v{r}" if n == 1 else f"v[{r}:{r+n-1}]"

def mk_srd(r, p, size):
    a(f"s_mov_b32 s{r}, s{p}\ns_mov_b32 s{r+1}, s{p+1}\ns_mov_b32 s{r+2}, {size}\ns_mov_b32 s{r+3}, 0x20000")

nst = [0]
def stamp(i):
    if STAMPS:
        a(f"s_memrealtime s[{sST+2*i}:{sST+2*i+1}]\ns_waitcnt lgkmcnt(0)")

vLANE, vMISC, vONE, vT = 1, 2, 3, 4

def arrive(idx):
    a(f"s_mov_b64 exec, 1\nds_add_u32 v{vMISC}, v{vONE} offset:{4*idx}\ns_mov_b64 exec, -1")

def lds_wait_ge(idx, val, sleep=1):
    L = a.newlabel("W"); Dn = a.newlabel("WD")
    a.label(L)
    a(f"ds_read_b32 v{vT}, v{vMISC} offset:{4*idx}\ns_waitcnt lgkmcnt(0)\nv_readfirstlane_b32 s{sT3}, v{vT}")
    a(f"s_cmp_ge_u32 s{sT3}, {val}\ns_cbranch_scc1 {Dn}")
    a(f"s_sub_u32 s{sBUD}, s{sBUD}, 1\ns_cselect_b32 s{sBUD}, 0, s{sBUD}\ns_cbranch_scc1 {Dn}\ns_sleep {sleep}\ns_branch {L}")
    a.label(Dn)

def get_nonce():
    lds_wait_ge(NONCE, 1)
    a(f"s_mov_b32 s{sNON}, s{sT3}")

def glob_poll(vaddr, vdst, n=1, sleep=1):
    L = a.newlabel("P"); Dn = a.newlabel("PD")
    a.label(L)
    a(f"buffer_load_dword{'x2' if n == 2 else ''} {vr(vdst, n)}, v{vaddr}, {srd(SWS)}, 0 offen sc1")
    a(f"s_waitcnt vmcnt(0)\nv_cmp_ne_u32 vcc, s{sNON}, v{vdst}\ns_cbranch_vccz {Dn}")
    a(f"s_sub_u32 s{sBUD}, s{sBUD}, 16\ns_cselect_b32 s{sBUD}, 0, s{sBUD}\ns_cbranch_scc1 {Dn}\ns_sleep {sleep}\ns_branch {L}")
    a.label(Dn)

def publish_last(cidx, total, soff_flag, vtmp, payload=None):
    Dn = a.newlabel("PUB")
    a(f"s_mov_b64 exec, 1\nds_add_rtn_u32 v{vT}, v{vMISC}, v{vONE} offset:{4*cidx}\ns_waitcnt lgkmcnt(0)")
    a(f"v_readfirstlane_b32 s{sT3}, v{vT}\ns_cmp_eq_u32 s{sT3}, {total}\ns_cbranch_scc0 {Dn}")
    a(f"v_mov_b32 v{vtmp}, s{sNON}\nv_mov_b32 v{vtmp+2}, 0")
    if payload:
        payload(vtmp + 1)
        a(f"buffer_store_dwordx2 v[{vtmp}:{vtmp+1}], v{vtmp+2}, {srd(SWS)}, s{soff_flag} offen sc1")
    else:
        a(f"buffer_store_dword v{vtmp}, v{vtmp+2}, {srd(SWS)}, s{soff_flag} offen sc1")
    a.label(Dn)
    a("s_mov_b64 exec, -1")

def dma(voff, s_rd, soff, m0expr_sgpr=None, m0_imm=None, offset=0, sc1=False):
    a(f"buffer_load_dwordx4 v{voff}, {srd(s_rd)}, {soff} offen" + (f" offset:{offset}" if offset else "") + (" sc1" if sc1 else "") + " lds")

def write_stamps_and_end():
    if STAMPS:
        a(f"s_mul_i32 s{sA}, s{sWG}, 12\ns_add_u32 s{sA}, s{sA}, s{sWAVE}\ns_lshl_b32 s{sA}, s{sA}, 6\ns_add_u32 s{sA}, s{sA}, {WS_ST}")
        a("s_mov_b64 exec, 1")
        a(f"v_mov_b32 v10, 0")
        for i in range(0, 10, 2):
            a(f"v_mov_b32 v12, s{sST+2*i}\nv_mov_b32 v13, s{sST+2*i+2}")
            a(f"buffer_store_dwordx2 v[12:13], v10, {srd(SWS)}, s{sA} offen offset:{4*i}\ns_waitcnt vmcnt(0)")
        a(f"v_mov_b32 v12, s{sBUD}\nbuffer_store_dword v12, v10, {srd(SWS)}, s{sA} offen offset:40\ns_waitcnt vmcnt(0)")
    a("s_endpgm")

a(f"s_cmp_ge_u32 s{sWG}, 256\ns_cbranch_scc1 L_exit")
if STAMPS:
    for i in range(20): a(f"s_mov_b32 s{sST+i}, 0")
    a(f"s_memrealtime s[{sST}:{sST+1}]")
a(f"s_load_dwordx16 s[36:51], s[0:1], 0\ns_load_dwordx8 s[52:59], s[0:1], 64\ns_load_dwordx4 s[60:63], s[0:1], 96")
a(f"v_lshrrev_b32 v{vT}, 6, v0\nv_and_b32 v{vLANE}, 63, v0\nv_mov_b32 v{vMISC}, {LDS_MISC}\nv_mov_b32 v{vONE}, 1")
a(f"v_readfirstlane_b32 s{sWAVE}, v{vT}")
a(f"s_and_b32 s{sRB}, s{sWG}, 7\ns_lshl_b32 s{sRB}, s{sRB}, 2\ns_bfe_u32 s{sA}, s{sWG}, 0x20003\ns_add_u32 s{sRB}, s{sRB}, s{sA}")
a(f"s_lshr_b32 s{sCB}, s{sWG}, 5")
a(f"s_and_b32 s{sA}, s{sRB}, 1\ns_lshl_b32 s{sA}, s{sA}, 2\ns_sub_u32 s{sJOB}, s{sCB}, s{sA}\ns_min_u32 s{sJOB}, s{sJOB}, 4")
a(f"s_mov_b32 s{sBUD}, 0x100000\ns_mov_b32 s{sNON}, 0")
a("s_waitcnt lgkmcnt(0)")
mk_srd(SWS, pWS, WS_SIZE)
a(f"s_cmp_ge_u32 s{sWAVE}, 8\ns_cbranch_scc1 L_bteam")

vXO = 5; vWQO = 6; vAX = 10; vAW = 14; vAW2 = 15
FR = 16; QA = 48
S0, S1, OA, PP, Q0, Q1, K0, K1, V0, V1 = 64, 80, 96, 112, 120, 124, 128, 132, 136, 140
aK0, aK1, aV, vRDY = 144, 145, 146, 147
t0, t1, t2, t3 = 148, 149, 150, 151
sETA, sRH = sL0, sL1
sN, sSLOT, sDEL, sCNT, sTGT, sPASS = sL2, sL3, sL4, sL5, sL6, sL7

mk_srd(SR1, pX, 2359296)
mk_srd(SR2, pWQ, 663552)
a(f"s_and_b32 s{sETA}, s{sWAVE}, 3\ns_lshr_b32 s{sRH}, s{sWAVE}, 2")
a(f"s_lshl_b32 s{sA}, s{sRB}, 6\ns_lshl_b32 s{sB_}, s{sWAVE}, 3\ns_add_u32 s{sA}, s{sA}, s{sB_}")
a(f"v_lshrrev_b32 v{t0}, 3, v{vLANE}\nv_add_u32 v{t0}, s{sA}, v{t0}\nv_mul_u32_u24 v{t0}, 1152, v{t0}")
a(f"s_and_b32 s{sB_}, s{sWAVE}, 1\ns_lshl_b32 s{sB_}, s{sB_}, 2")
a(f"v_lshrrev_b32 v{t1}, 4, v{vLANE}\nv_add_u32 v{t1}, s{sB_}, v{t1}\nv_and_b32 v{t2}, 7, v{vLANE}\nv_xor_b32 v{t1}, v{t1}, v{t2}")
a(f"v_lshl_add_u32 v{vXO}, v{t1}, 4, v{t0}")
a(f"s_mul_i32 s{sC}, s{sWAVE}, 9216")
def rows_dma(s_rd, soff, ldsbase, sc1):
    for cbk in range(9):
        a(f"s_add_u32 m0, s{sC}, {ldsbase + cbk*896}\ns_nop 0")
        dma(vXO, s_rd, soff, offset=128*cbk, sc1=sc1)
rows_dma(SR1, "0", LDS_X, False)
for i in range(4):
    a(f"s_add_u32 s{sA}, s{sWAVE}, {8*i}\ns_min_u32 s{sA}, s{sA}, 26\ns_lshl_b32 s{sA}, s{sA}, 6")
    a(f"v_add_u32 v{t0}, s{sA}, v{vLANE}\nv_mul_u32_u24 v{t1}, 7282, v{t0}\nv_lshrrev_b32 v{t1}, 16, v{t1}")
    a(f"v_mul_u32_u24 v{t2}, 9, v{t1}\nv_sub_u32 v{t2}, v{t0}, v{t2}\nv_mul_u32_u24 v{t1}, 1152, v{t1}")
    a(f"v_lshl_add_u32 v{vWQO+i}, v{t2}, 4, v{t1}")
def wq_dma(stage):
    a(f"s_mul_i32 s{sD}, s{sCB}, 144\ns_add_u32 s{sD}, s{sD}, {stage*192*1152}")
    for i in range(4):
        a(f"s_add_u32 s{sA}, s{sWAVE}, {8*i}\ns_min_u32 s{sA}, s{sA}, 26\ns_lshl_b32 s{sA}, s{sA}, 10")
        a(f"s_add_u32 m0, s{sA}, {LDS_WQ + stage*27648}\ns_nop 0")
        dma(vWQO + i, SR2, f"s{sD}")
wq_dma(0); wq_dma(1)
a(f"s_cmp_lt_u32 s{sJOB}, 4\ns_cbranch_scc1 L_a_skip2")
wq_dma(2)
a.label("L_a_skip2")
a(f"v_and_b32 v{t0}, 31, v{vLANE}\ns_lshl_b32 s{sA}, s{sRH}, 5\nv_add_u32 v{t0}, s{sA}, v{t0}")
a(f"v_lshrrev_b32 v{t1}, 3, v{t0}\nv_mul_u32_u24 v{t1}, 9216, v{t1}\nv_and_b32 v{t2}, 7, v{t0}\nv_lshl_add_u32 v{t1}, v{t2}, 7, v{t1}")
a(f"v_bfe_u32 v{t2}, v{t0}, 1, 3\nv_lshrrev_b32 v{t3}, 5, v{vLANE}\nv_xor_b32 v{t2}, v{t2}, v{t3}")
for q in range(4):
    a(f"v_xor_b32 v{t3}, {2*q}, v{t2}\nv_lshl_add_u32 v{vAX+q}, v{t3}, 4, v{t1}")
TBL_E = sum(v << (4*i) for i, v in enumerate([0, 2, 1, 3, 4, 4, 4, 4]))
TBL_O = sum(v << (4*i) for i, v in enumerate([0, 2, 1, 3, 2, 4, 4, 4]))
a(f"s_bitcmp1_b32 s{sETA}, 0\ns_mov_b32 s{sA}, {TBL_E:#x}\ns_cselect_b32 s{sA}, {TBL_O:#x}, s{sA}")
a(f"s_mul_i32 s{sB_}, s{sETA}, 9\ns_lshr_b32 s{sB_}, s{sB_}, 1")
a(f"v_bfe_u32 v{t0}, v{vLANE}, 4, 1\nv_and_b32 v{t1}, 3, v{vLANE}\nv_lshl_add_u32 v{t0}, v{t0}, 2, v{t1}\nv_lshlrev_b32 v{t0}, 2, v{t0}")
a(f"v_lshrrev_b32 v{t0}, v{t0}, s{sA}\nv_and_b32 v{t0}, 15, v{t0}\nv_add_u32 v{t0}, s{sB_}, v{t0}")
a(f"v_lshrrev_b32 v{t1}, 5, v{vLANE}\nv_bfe_u32 v{t2}, v{vLANE}, 2, 2\nv_lshl_add_u32 v{t1}, v{t1}, 3, v{t2}\nv_mul_u32_u24 v{t1}, 144, v{t1}")
a(f"v_lshl_add_u32 v{vAW}, v{t0}, 3, v{t1}\nv_add_u32 v{vAW}, {LDS_WQ}, v{vAW}\nv_add_u32 v{vAW2}, {2*27648}, v{vAW}")
a(f"v_lshlrev_b32 v{aK0}, 4, v{vLANE}\nv_add_u32 v{aK0}, {LDS_RING}, v{aK0}")
a(f"v_and_b32 v{t0}, 31, v{vLANE}\nv_lshlrev_b32 v{aK1}, 4, v{t0}\nv_add_u32 v{aK1}, {LDS_RING}, v{aK1}")
a(f"v_min_u32 v{t1}, 18, v{t0}\nv_subrev_u32 v{t2}, 20, v{t0}\nv_cmp_gt_u32 vcc, 8, v{t2}\ns_nop 1\nv_cndmask_b32 v{t1}, v{t1}, 0, vcc")
a(f"v_lshrrev_b32 v{t2}, 5, v{vLANE}\nv_mul_u32_u24 v{t2}, 20, v{t2}\nv_add_u32 v{t1}, v{t1}, v{t2}\nv_lshlrev_b32 v{aV}, 4, v{t1}\nv_add_u32 v{aV}, {LDS_RING+2048}, v{aV}")
for i in range(16): a(f"v_mov_b32 v{QA+i}, 0")
a("s_barrier")
stamp(1)
a(f"s_cmp_lt_u32 s{sJOB}, 4\ns_cbranch_scc1 L_a_kvw")
a("s_waitcnt vmcnt(8)")
arrive(C_S0)
a("s_branch L_a_st0")
a.label("L_a_kvw")
a("s_waitcnt vmcnt(8)")
arrive(C_X)
a("s_waitcnt vmcnt(4)")
arrive(C_S0)
a.label("L_a_st0")

def q_stage(st):
    base = vAW if st < 2 else vAW2
    off0 = st * 27648 if st < 2 else 0
    a.q_start()
    def rd(s):
        b = FR + 8 * (s % 4)
        gs = 12 * st + s
        a.ds(f"ds_read_b64_tr_b16 v[{b}:{b+1}], v{base} offset:{off0 + s*2304}", ("A", s))
        a.ds(f"ds_read_b64_tr_b16 v[{b+2}:{b+3}], v{base} offset:{off0 + s*2304 + 576}", ("A2", s))
        a.ds(f"ds_read_b128 v[{b+4}:{b+7}], v{vAX + (gs & 3)} offset:{LDS_X + (gs >> 2)*1024}", ("B", s))
    for s in range(4): rd(s)
    for s in range(12):
        b = FR + 8 * (s % 4)
        a.need(("B", s))
        a(f"v_mfma_f32_32x32x16_bf16 v[{QA}:{QA+15}], v[{b}:{b+3}], v[{b+4}:{b+7}], v[{QA}:{QA+15}]")
        if s + 4 < 12: rd(s + 4)

lds_wait_ge(C_S0, 8)
stamp(2)
q_stage(0)
arrive(C_Q0)
a(f"s_cmp_lt_u32 s{sJOB}, 4\ns_cbranch_scc0 L_a_no2")
lds_wait_ge(C_KVJ, 4)
wq_dma(2)
a.label("L_a_no2")
a("s_waitcnt vmcnt(4)")
arrive(C_S1)
lds_wait_ge(C_S1, 8)
q_stage(1)
arrive(C_Q1)
a("s_waitcnt vmcnt(0)")
arrive(C_S2)
lds_wait_ge(C_S2, 8)
q_stage(2)
arrive(C_Q2)
a.nop(10)
a(f"s_mov_b32 s{sA}, {fbits(QSCALE):#x}")
a(f"s_bitcmp1_b32 s{sETA}, 0\ns_cbranch_scc0 L_a_qeven")
for i in range(8): a(f"v_mul_f32 v{FR+i}, s{sA}, v{QA+2+i}")
a(f"v_mul_f32 v{FR+8}, s{sA}, v{QA+14}\nv_mul_f32 v{FR+9}, s{sA}, v{QA+15}\ns_branch L_a_qj")
a.label("L_a_qeven")
for i in range(10): a(f"v_mul_f32 v{FR+i}, s{sA}, v{QA+i}")
a.label("L_a_qj")
a(f"v_cmp_gt_u32 vcc, 32, v{vLANE}\ns_nop 1\nv_cndmask_b32 v{FR+8}, 0, v{FR+8}, vcc\nv_cndmask_b32 v{FR+9}, 0, v{FR+9}, vcc")
for i in range(4): a(f"v_cvt_pk_bf16_f32 v{Q0+i}, v{FR+2*i}, v{FR+2*i+1}")
a(f"v_cvt_pk_bf16_f32 v{Q1}, v{FR+8}, v{FR+9}\nv_mov_b32 v{Q1+1}, 0")
a(f"v_mul_f32 v{t0}, v{FR}, v{FR}")
for i in range(1, 10): a(f"v_fmac_f32 v{t0}, v{FR+i}, v{FR+i}")
a(f"v_mov_b32 v{t1}, v{t0}\ns_nop 1\nv_permlane32_swap_b32 v{t0}, v{t1}\ns_nop 1\nv_add_f32 v{t0}, v{t0}, v{t1}")
a(f"ds_max_u32 v{vMISC}, v{t0} offset:{4*QN2}")
stamp(3)
a(f"s_mov_b32 s{sN}, 0\ns_mov_b32 s{sSLOT}, 0\ns_mov_b32 s{sPASS}, 0")
a(f"s_lshl_b32 s{sA}, s{sWAVE}, 2\ns_add_u32 s{sA}, s{sA}, {LDS_MISC + 4*PROG}\nv_mov_b32 v{t3}, s{sA}")
vPROGA = t3

a.label("L_pass")
a(f"s_add_u32 s{sA}, s{sN}, 1")
lds_wait_ge(KV_READY, f"s{sA}")
stamp(4)
a(f"ds_read_b128 v[{K1}:{K1+3}], v{aK1} offset:4608\nds_read_b128 v[{K0}:{K0+3}], v{aK0}")
for i in range(16): a(f"v_mov_b32 v{OA+i}, 0")
for i in range(4): a(f"v_mov_b32 v{PP+4+i}, 0\nv_mov_b32 v{V1+i}, 0")
a("s_waitcnt lgkmcnt(0)")
a(f"v_mfma_f32_32x32x8_bf16 v[{S0}:{S0+15}], v[{K1}:{K1+1}], v[{Q1}:{Q1+1}], 0")
a(f"v_mfma_f32_32x32x16_bf16 v[{S0}:{S0+15}], v[{K0}:{K0+3}], v[{Q0}:{Q0+3}], v[{S0}:{S0+15}]")
a(f"ds_read_b128 v[{K0}:{K0+3}], v{aK0} offset:1024\nds_read_b128 v[{V0}:{V0+3}], v{aV}")
a(f"s_mov_b32 s{sCNT}, 0")
a.nop(10)
a(".p2align 5")
a.label("L_att")
a(f"s_cmp_eq_u32 s{sSLOT}, 2\ns_mov_b32 s{sDEL}, {CHUNK}\ns_cselect_b32 s{sDEL}, {(-2*CHUNK) & 0xffffffff:#x}, s{sDEL}\ns_add_u32 s{sSLOT}, s{sSLOT}, 1\ns_cmp_eq_u32 s{sSLOT}, 3\ns_cselect_b32 s{sSLOT}, 0, s{sSLOT}")
a(f"s_add_u32 s{sTGT}, s{sN}, 2\ns_cmp_eq_u32 s{sCNT}, 7\ns_cselect_b32 s{sTGT}, 0, s{sTGT}")
a.q_start(["V1", "K0", "V0"])
def koff(u): return (u >> 1) * 5120 + (u & 1) * 1024
def voff(u): return (u >> 1) * 5120 + (u & 1) * 1280
for u in range(8):
    Sc = (S0, S1)[u & 1]; Sn = (S0, S1)[1 - (u & 1)]
    e = lambda i: a(f"v_exp_f32 v{Sc+i}, v{Sc+i}")
    c = lambda i: a(f"v_cvt_pk_bf16_f32 v{PP+i}, v{Sc+2*i}, v{Sc+2*i+1}")
    a.need("K1", "V1")
    k1 = K1 + 2 * ((u + 1) & 1)
    a(f"v_mfma_f32_32x32x8_bf16 v[{Sn}:{Sn+15}], v[{k1}:{k1+1}], v[{Q1}:{Q1+1}], 0")
    if (u + 1) & 1:
        a.ds(f"ds_read_b128 v[{K1}:{K1+3}], v{aK1} offset:{(((u+2) >> 1) & 3)*5120 + 4608}", "K1")
    if u == 1:
        a(f"s_mov_b64 exec, 1")
        a.ds(f"ds_write_b32 v{vPROGA}, v{vRDY}", "PR")
        a(f"s_mov_b64 exec, -1")
    if u == 3:
        a.ds(f"ds_read_b32 v{vRDY}, v{vMISC} offset:{4*KV_READY}", "RD")
    for i in range(4): e(i)
    a(f"v_mfma_f32_32x32x16_bf16 v[{OA}:{OA+15}], v[{V1}:{V1+3}], v[{PP+4}:{PP+7}], v[{OA}:{OA+15}]")
    a.ds(f"ds_read_b128 v[{V1}:{V1+3}], v{aV} offset:{voff(u) + 640}", "V1")
    c(0); c(1)
    if u == 0: a(f"v_mov_b32 v{vRDY}, s{sN}")
    if u == 7: a(f"v_add_u32 v{aV}, s{sDEL}, v{aV}")
    for i in range(4, 8): e(i)
    a.need("K0", "V0")
    a(f"v_mfma_f32_32x32x16_bf16 v[{Sn}:{Sn+15}], v[{K0}:{K0+3}], v[{Q0}:{Q0+3}], v[{Sn}:{Sn+15}]")
    a.ds(f"ds_read_b128 v[{K0}:{K0+3}], v{aK0} offset:{koff((u+2) & 7)}", "K0")
    c(2); c(3)
    for i in range(8, 12): e(i)
    a(f"v_mfma_f32_32x32x16_bf16 v[{OA}:{OA+15}], v[{V0}:{V0+3}], v[{PP}:{PP+3}], v[{OA}:{OA+15}]")
    a.ds(f"ds_read_b128 v[{V0}:{V0+3}], v{aV} offset:{voff((u+1) & 7)}", "V0")
    c(4); c(5)
    if u == 5:
        assert "RD" not in a.lgkm
        a(f"v_readfirstlane_b32 s{sT3}, v{vRDY}\nv_add_u32 v{aK0}, s{sDEL}, v{aK0}\nv_add_u32 v{aK1}, s{sDEL}, v{aK1}")
    for i in range(12, 16): e(i)
    c(6); c(7)
    if u == 5:
        a(f"s_cmp_lt_u32 s{sT3}, s{sTGT}\ns_cbranch_scc1 L_att_slow")
        a.label("L_att_back")
assert a.lgkm == ["V1", "K0", "V0"], a.lgkm
a(f"s_add_u32 s{sN}, s{sN}, 1\ns_add_u32 s{sCNT}, s{sCNT}, 1\ns_cmp_lt_u32 s{sCNT}, 8\ns_cbranch_scc1 L_att")
a("s_waitcnt lgkmcnt(0)\ns_nop 0")
a(f"v_mfma_f32_32x32x16_bf16 v[{OA}:{OA+15}], v[{V1}:{V1+3}], v[{PP+4}:{PP+7}], v[{OA}:{OA+15}]")
a(f"v_mov_b32 v{vRDY}, s{sN}\ns_mov_b64 exec, 1\nds_write_b32 v{vPROGA}, v{vRDY}\ns_mov_b64 exec, -1")
stamp(5)
a(f"s_cmp_lg_u32 s{sPASS}, 0\ns_cbranch_scc1 L_att_done")
a(f"ds_read_b32 v{vT}, v{vMISC} offset:{4*FB}\ns_waitcnt lgkmcnt(0)\nv_readfirstlane_b32 s{sT3}, v{vT}\ns_cmp_eq_u32 s{sT3}, 0\ns_cbranch_scc0 L_maxpass")
a.label("L_att_done")
get_nonce()
a.nop(8)
a(f"v_cmp_gt_u32 vcc, 32, v{vLANE}\ns_nop 1\nv_cndmask_b32 v{t0}, v{OA+12}, v{OA+10}, vcc\nv_rcp_f32 v{t0}, v{t0}\ns_nop 0")
for i in range(10): a(f"v_mul_f32 v{OA+i}, v{OA+i}, v{t0}")
for i in range(5): a(f"v_cvt_pk_bf16_f32 v{PP+i}, v{OA+2*i}, v{OA+2*i+1}")
a(f"s_lshl_b32 s{sA}, s{sRB}, 6\ns_lshl_b32 s{sB_}, s{sRH}, 5\ns_add_u32 s{sA}, s{sA}, s{sB_}")
a(f"v_and_b32 v{t1}, 31, v{vLANE}\nv_add_u32 v{t1}, s{sA}, v{t1}\nv_mul_u32_u24 v{t1}, 1152, v{t1}")
a(f"v_lshrrev_b32 v{t2}, 5, v{vLANE}\nv_lshl_add_u32 v{t2}, v{t2}, 4, v{t1}")
a(f"s_lshl_b32 s{sA}, s{sCB}, 2\ns_add_u32 s{sA}, s{sA}, s{sETA}\ns_lshl_b32 s{sB_}, s{sA}, 5\ns_add_u32 s{sB_}, s{sB_}, {WS_O}")
a(f"s_lshl_b32 s{sA}, s{sA}, 2\ns_add_u32 s{sA}, s{sA}, {WS_O + 1024}")
a(f"buffer_store_dwordx4 v[{PP}:{PP+3}], v{t2}, {srd(SWS)}, s{sB_} offen sc1")
a(f"s_mov_b64 exec, vcc\nbuffer_store_dword v{PP+4}, v{t1}, {srd(SWS)}, s{sA} offen sc1\ns_mov_b64 exec, -1")
vAO = 10; vAWO = 12; vOUT = 15
ACC = 64
a(f"s_lshl_b32 s{sA}, s{sETA}, 4\nv_and_b32 v{t0}, 15, v{vLANE}\nv_add_u32 v{t0}, s{sA}, v{t0}")
a(f"v_lshrrev_b32 v{t1}, 3, v{t0}\nv_mul_u32_u24 v{t1}, 9216, v{t1}\nv_and_b32 v{t2}, 7, v{t0}\nv_lshl_add_u32 v{t1}, v{t2}, 7, v{t1}\nv_add_u32 v{t1}, {LDS_RING}, v{t1}")
a(f"v_bfe_u32 v{t2}, v{t0}, 1, 3\nv_lshrrev_b32 v{vT}, 4, v{vLANE}\nv_xor_b32 v{t2}, v{t2}, v{vT}")
a(f"v_lshl_add_u32 v{vAO}, v{t2}, 4, v{t1}\nv_xor_b32 v{t2}, 4, v{t2}\nv_lshl_add_u32 v{vAO+1}, v{t2}, 4, v{t1}")
a(f"s_lshl_b32 s{sA}, s{sRB}, 6\nv_add_u32 v{t0}, s{sA}, v{t0}\nv_mul_u32_u24 v{t0}, 2304, v{t0}\nv_lshl_add_u32 v{vOUT}, v{vT}, 3, v{t0}")
a(f"s_mul_i32 s{sE}, s{sCB}, 144\ns_mul_i32 s{sA}, s{sRH}, 96\ns_add_u32 s{sE}, s{sE}, s{sA}")
a(f"v_bfe_u32 v{t0}, v{vLANE}, 2, 2\nv_lshl_add_u32 v{t0}, v{vT}, 3, v{t0}\nv_mul_u32_u24 v{t0}, 144, v{t0}\nv_and_b32 v{t1}, 3, v{vLANE}\nv_lshl_add_u32 v{t0}, v{t1}, 3, v{t0}")
a(f"v_add_u32 v{vAWO}, s{sA}, v{t0}\nv_add_u32 v{vAWO+1}, {8*4608}, v{vAWO}\nv_add_u32 v{vAWO+2}, {LDS_WOT}, v{vAWO}")
for i in range(12): a(f"v_mov_b32 v{ACC+i}, 0")
mk_srd(SR3, pOUT, 4718592)
a(f"s_lshl_b32 s{sA}, s{sRB}, 3\ns_add_u32 s{sB_}, s{sA}, s{sCB}\ns_lshl_b32 s{sB_}, s{sB_}, 7\ns_add_u32 s{sB_}, s{sB_}, {FL_O}")
a(f"s_lshl_b32 s{sA}, s{sA}, 7\ns_add_u32 s{sA}, s{sA}, {FL_O}\nv_and_b32 v{t0}, 7, v{vLANE}\nv_lshlrev_b32 v{t0}, 7, v{t0}\nv_add_u32 v{t3}, s{sA}, v{t0}")
a("s_waitcnt vmcnt(0)")
publish_last(C_O, 7, sB_, t0)
stamp(6)
a(f"s_cmp_lg_u32 s{sWAVE}, 0\ns_cbranch_scc1 L_o_wait")
glob_poll(t3, t0)
lds_wait_ge(WO_READY, 1)
a.label("L_o_wait")
a("s_barrier")
stamp(7)
a(f"s_mov_b32 s{sD}, {WS_O}")
rows_dma(SWS, f"s{sD}", LDS_RING, True)

def op_stage(st, nt):
    a.q_start()
    FB0 = 80
    def rd(s):
        gs = 6 * st + s
        b = FB0 + 16 * (s % 2)
        a.ds(f"ds_read_b128 v[{b}:{b+3}], v{vAO + (gs & 1)} offset:{(gs >> 1)*1024}", ("B", s))
        if gs < 8: base, off = vAWO, gs * 4608
        elif gs < 16: base, off = vAWO + 1, (gs - 8) * 4608
        else: base, off = vAWO + 2, (gs - 16) * 4608
        for j in range(nt):
            a.ds(f"ds_read_b64_tr_b16 v[{b+4+4*j}:{b+5+4*j}], v{base} offset:{off + 32*j}", ("A", s, j))
            a.ds(f"ds_read_b64_tr_b16 v[{b+6+4*j}:{b+7+4*j}], v{base} offset:{off + 32*j + 576}", ("A2", s, j))
    rd(0); rd(1)
    for s in range(6):
        b = FB0 + 16 * (s % 2)
        for j in range(nt):
            a.need(("A2", s, j))
            a(f"v_mfma_f32_16x16x32_bf16 v[{ACC+4*j}:{ACC+4*j+3}], v[{b+4+4*j}:{b+7+4*j}], v[{b}:{b+3}], v[{ACC+4*j}:{ACC+4*j+3}]")
        if s + 2 < 6: rd(s + 2)

def outproj(nt):
    for st in range(3):
        a(f"s_waitcnt vmcnt({6 - 3*st})\ns_barrier")
        op_stage(st, nt)
    a.nop(8)
    for j in range(nt):
        a(f"v_cvt_pk_bf16_f32 v{ACC+4*j}, v{ACC+4*j}, v{ACC+4*j+1}\nv_cvt_pk_bf16_f32 v{ACC+4*j+1}, v{ACC+4*j+2}, v{ACC+4*j+3}")
    for j in range(nt):
        if nt == 2 and j == 1:
            a(f"s_mov_b32 exec_hi, 0")
        a(f"buffer_store_dwordx2 v[{ACC+4*j}:{ACC+4*j+1}], v{vOUT}, {srd(SR3)}, s{sE} offen offset:{32*j}")
    stamp(8)
    write_stamps_and_end()
a(f"s_cmp_lg_u32 s{sRH}, 0\ns_cbranch_scc1 L_op2")
outproj(3)
a.label("L_op2")
outproj(2)

a.label("L_att_slow")
Lsp = a.newlabel("SP")
a.label(Lsp)
a(f"s_sleep 1\nds_read_b32 v{vT}, v{vMISC} offset:{4*KV_READY}\ns_waitcnt lgkmcnt(0)\nv_readfirstlane_b32 s{sT3}, v{vT}")
a(f"s_cmp_ge_u32 s{sT3}, s{sTGT}\ns_cbranch_scc1 L_att_back\ns_sub_u32 s{sBUD}, s{sBUD}, 1\ns_cselect_b32 s{sBUD}, 0, s{sBUD}\ns_cbranch_scc1 L_att_back\ns_branch {Lsp}")

a.label("L_maxpass")
MX = OA
a(f"v_mov_b32 v{MX}, 0xff800000\ns_mov_b32 s{sCNT}, 0")
a.label("L_mx_chunk")
a(f"s_add_u32 s{sA}, s{sN}, 1")
lds_wait_ge(KV_READY, f"s{sA}")
for u in range(8):
    a(f"ds_read_b128 v[{K0}:{K0+3}], v{aK0} offset:{koff(u)}\nds_read_b64 v[{K1}:{K1+1}], v{aK1} offset:{(u >> 1)*5120 + 4608 + 8*(u & 1)}\ns_waitcnt lgkmcnt(0)")
    a(f"v_mfma_f32_32x32x8_bf16 v[{S0}:{S0+15}], v[{K1}:{K1+1}], v[{Q1}:{Q1+1}], 0")
    a(f"v_mfma_f32_32x32x16_bf16 v[{S0}:{S0+15}], v[{K0}:{K0+3}], v[{Q0}:{Q0+3}], v[{S0}:{S0+15}]")
    a.nop(12)
    for i in range(0, 16, 2): a(f"v_max3_f32 v{MX}, v{S0+i}, v{S0+i+1}, v{MX}")
a(f"s_cmp_eq_u32 s{sSLOT}, 2\ns_mov_b32 s{sDEL}, {CHUNK}\ns_cselect_b32 s{sDEL}, {(-2*CHUNK) & 0xffffffff:#x}, s{sDEL}\ns_add_u32 s{sSLOT}, s{sSLOT}, 1\ns_cmp_eq_u32 s{sSLOT}, 3\ns_cselect_b32 s{sSLOT}, 0, s{sSLOT}")
a(f"v_add_u32 v{aK0}, s{sDEL}, v{aK0}\nv_add_u32 v{aK1}, s{sDEL}, v{aK1}\nv_add_u32 v{aV}, s{sDEL}, v{aV}")
a(f"s_add_u32 s{sN}, s{sN}, 1\nv_mov_b32 v{vRDY}, s{sN}\ns_mov_b64 exec, 1\nds_write_b32 v{vPROGA}, v{vRDY}\ns_mov_b64 exec, -1")
a(f"s_add_u32 s{sCNT}, s{sCNT}, 1\ns_cmp_lt_u32 s{sCNT}, 8\ns_cbranch_scc1 L_mx_chunk")
a(f"v_mov_b32 v{t1}, v{MX}\ns_nop 1\nv_permlane32_swap_b32 v{MX}, v{t1}\ns_nop 1\nv_max_f32 v{t0}, v{MX}, v{t1}\nv_sub_f32 v{t0}, 0, v{t0}")
a(f"v_and_b32 v{t1}, 0xffff0000, v{t0}\nv_sub_f32 v{t0}, v{t0}, v{t1}\nv_and_b32 v{t2}, 0xffff0000, v{t0}\nv_sub_f32 v{t0}, v{t0}, v{t2}")
a(f"v_lshrrev_b32 v{t1}, 16, v{t1}\nv_or_b32 v{t1}, v{t1}, v{t2}\nv_lshrrev_b32 v{t0}, 16, v{t0}")
a(f"v_cmp_gt_u32 vcc, 32, v{vLANE}\ns_nop 1\nv_cndmask_b32 v{Q1+1}, v{t0}, v{t1}, vcc")
a(f"s_mov_b32 s{sPASS}, 1\ns_branch L_pass")

a.label("L_bteam")
sBI = sL0
a(f"s_sub_u32 s{sBI}, s{sWAVE}, 8")
b0, b1, b2, b3, b4, b5 = 5, 6, 7, 8, 9, 10
vNON = 11
KR = 16
VR = 36
SHR = 52
KU = 56
SHU = 96
RS = 104
OU = 136
a(f"s_cmp_lg_u32 s{sBI}, 3\ns_cbranch_scc1 L_b_nn")
a(f"v_lshlrev_b32 v{b0}, 2, v{vLANE}\nv_add_u32 v{b0}, {LDS_MISC}, v{b0}\nv_mov_b32 v{b1}, 0\nds_write_b32 v{b0}, v{b1}")
mk_srd(SR5, pDBG, 256)
a(f"s_cmp_lg_u32 s{sWG}, 0\ns_cbranch_scc1 L_b_n1")
a(f"s_memrealtime s[{sA}:{sA+1}]\ns_waitcnt lgkmcnt(0)\ns_or_b32 s{sA}, s{sA}, 1\nv_mov_b32 v{vNON}, s{sA}")
a(f"s_mov_b64 exec, 1\nbuffer_store_dword v{vNON}, v{b1}, {srd(SR5)}, 0 offen sc1\ns_mov_b64 exec, -1\ns_branch L_b_nn")
a.label("L_b_n1")
a(f"buffer_load_dword v{vNON}, v{b1}, {srd(SR5)}, 0 offen sc1")
a.label("L_b_nn")
a(f"s_cmp_ge_u32 s{sJOB}, 4\ns_cbranch_scc1 L_b_nowk")
a(f"s_cmp_lt_u32 s{sJOB}, 2\ns_cselect_b32 s{SR1}, s{pWK}, s{pWV}\ns_cselect_b32 s{SR1+1}, s{pWK+1}, s{pWV+1}\ns_mov_b32 s{SR1+2}, 20736\ns_mov_b32 s{SR1+3}, 0x20000")
for j in range(3):
    a(f"v_add_u32 v{b3}, {64*j}, v{vLANE}\nv_mul_u32_u24 v{b4}, 21846, v{b3}\nv_lshrrev_b32 v{b4}, 16, v{b4}")
    a(f"v_mul_u32_u24 v{b5}, 3, v{b4}\nv_sub_u32 v{b5}, v{b3}, v{b5}\nv_mul_u32_u24 v{b4}, 36, v{b4}\nv_lshl_add_u32 v{12+j}, v{b5}, 4, v{b4}")
for g in range(3):
    a(f"s_add_u32 s{sA}, s{sBI}, {4*g}\ns_min_u32 s{sA}, s{sA}, 8\ns_mul_i32 s{sB_}, s{sA}, 2304\ns_mul_i32 s{sA}, s{sA}, 3072")
    for j in range(3):
        a(f"s_add_u32 m0, s{sA}, {LDS_WK + 1024*j}\ns_nop 0")
        dma(12 + j, SR1, f"s{sB_}")
a.label("L_b_nowk")
mk_srd(SR2, pK, 2359296)
mk_srd(SR3, pV, 2359296)
mk_srd(SR4, pSH, 4608)
a(f"s_lshl_b32 s{sA}, s{sRB}, 6\ns_lshl_b32 s{sB_}, s{sBI}, 4\ns_add_u32 s{sA}, s{sA}, s{sB_}\ns_mul_i32 s{sA}, s{sA}, 1152\ns_mul_i32 s{sB_}, s{sCB}, 144\ns_add_u32 s{sA}, s{sA}, s{sB_}")
a(f"v_min_u32 v{b0}, 35, v{vLANE}\nv_lshlrev_b32 v{b1}, 2, v{b0}\nv_add_u32 v{b1}, s{sA}, v{b1}\nv_subrev_u32 v{b2}, 3456, v{b1}")
a(f"s_mul_i32 s{sB_}, s{sCB}, 576\nv_lshlrev_b32 v{b3}, 4, v{b0}")
a(f"buffer_load_dwordx4 v[{SHR}:{SHR+3}], v{b3}, {srd(SR4)}, s{sB_} offen")
for r in range(3):
    a(f"buffer_load_dword v{KR+r}, v{b2}, {srd(SR2)}, 0 offen offset:{1152*r}")
a(f"s_mov_b32 s{sC}, 0")
for r in range(16):
    o = 1152 * (r % 4)
    a(f"buffer_load_dword v{KR+3+r}, v{b1}, {srd(SR2)}, s{sC} offen offset:{o}\nbuffer_load_dword v{VR+r}, v{b1}, {srd(SR3)}, s{sC} offen offset:{o}")
    if r % 4 == 3 and r < 15: a(f"s_add_u32 s{sC}, s{sC}, 4608")
a("s_waitcnt lgkmcnt(0)\ns_barrier")
stamp(1)
a("s_waitcnt vmcnt(36)")
a(f"s_cmp_ge_u32 s{sJOB}, 4\ns_cbranch_scc1 L_b_nowk2")
arrive(C_WK)
a.label("L_b_nowk2")
a(f"s_cmp_lg_u32 s{sBI}, 3\ns_cbranch_scc1 L_b_n2")
a(f"v_readfirstlane_b32 s{sNON}, v{vNON}\ns_cmp_lg_u32 s{sNON}, 0\ns_cbranch_scc1 L_b_n3")
a(f"v_mov_b32 v{b4}, 0\ns_waitcnt vmcnt(0)\nbuffer_load_dword v{vNON}, v{b4}, {srd(SR5)}, 0 offen sc1\ns_branch L_b_n2b")
a.label("L_b_n3")
a(f"ds_write_b32 v{vMISC}, v{vNON} offset:{4*NONCE}")
a.label("L_b_n2")
a("s_waitcnt vmcnt(0)")
a.label("L_b_n2b")
stamp(2)
for j in range(2):
    a(f"v_lshlrev_b32 v{SHU+4*j}, 16, v{SHR+j}\nv_and_b32 v{SHU+4*j+2}, 0xffff0000, v{SHR+j}")
    a(f"v_lshlrev_b32 v{SHU+4*j+1}, 16, v{SHR+2+j}\nv_and_b32 v{SHU+4*j+3}, 0xffff0000, v{SHR+2+j}")
for r in range(19):
    a(f"v_lshlrev_b32 v{KU+2*r}, 16, v{KR+r}\nv_and_b32 v{KU+2*r+1}, 0xffff0000, v{KR+r}")
for r in range(16):
    d = RS + 2 * r
    kk = lambda j: KU + 2 * (r + 3 - j)
    a(f"v_pk_mul_f32 v[{d}:{d+1}], v[{kk(3)}:{kk(3)+1}], v[{SHU+6}:{SHU+7}]")
    for j in (2, 1, 0):
        a(f"v_pk_fma_f32 v[{d}:{d+1}], v[{kk(j)}:{kk(j)+1}], v[{SHU+2*j}:{SHU+2*j+1}], v[{d}:{d+1}]")
    a(f"v_lshlrev_b32 v{KU+2*r}, 16, v{VR+r}\nv_and_b32 v{KU+2*r+1}, 0xffff0000, v{VR+r}")
    a(f"v_pk_mul_f32 v[{d}:{d+1}], v[{d}:{d+1}], v[{KU+2*r}:{KU+2*r+1}]")
for tg in range(2):
    for ch in range(2):
        for j in range(4):
            r = 8 * tg + 7 - 2 * j
            a(f"v_cvt_pk_bf16_f32 v{OU+8*tg+4*ch+j}, v{RS+2*r+ch}, v{RS+2*(r-1)+ch}")
a(f"s_mul_i32 s{sA}, s{sCB}, 72\nv_lshl_add_u32 v{b1}, v{b0}, 1, s{sA}\nv_lshlrev_b32 v{b1}, 12, v{b1}\nv_add_u32 v{b2}, 4096, v{b1}")
a(f"s_lshl_b32 s{sA}, s{sRB}, 5\ns_lshr_b32 s{sB_}, s{sBI}, 1\ns_lshl_b32 s{sB_}, s{sB_}, 4\ns_add_u32 s{sA}, s{sA}, s{sB_}")
a(f"s_and_b32 s{sB_}, s{sBI}, 1\ns_lshl_b32 s{sB_}, s{sB_}, 11\ns_add_u32 s{sA}, s{sA}, s{sB_}\ns_add_u32 s{sA}, s{sA}, {WS_U}")
a(f"s_mov_b32 exec_hi, 15")
for tg in range(2):
    for ch in range(2):
        a(f"buffer_store_dwordx4 v[{OU+8*tg+4*ch}:{OU+8*tg+4*ch+3}], v{b1+ch}, {srd(SWS)}, s{sA} offen offset:{1024*tg} sc1")
a("s_mov_b64 exec, -1")
stamp(3)
a(f"s_cmp_lg_u32 s{sBI}, 3\ns_cbranch_scc1 L_b_n5\ns_cmp_lg_u32 s{sNON}, 0\ns_cbranch_scc1 L_b_n5")
a(f"v_mov_b32 v{b4}, 0")
a.label("L_b_n4")
a(f"s_waitcnt vmcnt(0)\nv_readfirstlane_b32 s{sNON}, v{vNON}\ns_cmp_lg_u32 s{sNON}, 0\ns_cbranch_scc1 L_b_n6")
a(f"s_sub_u32 s{sBUD}, s{sBUD}, 16\ns_cselect_b32 s{sBUD}, 0, s{sBUD}\ns_cbranch_scc1 L_b_n6\nbuffer_load_dword v{vNON}, v{b4}, {srd(SR5)}, 0 offen sc1\ns_branch L_b_n4")
a.label("L_b_n6")
a(f"v_or_b32 v{vNON}, 1, v{vNON}\nds_write_b32 v{vMISC}, v{vNON} offset:{4*NONCE}")
a.label("L_b_n5")

a(f"s_cmp_ge_u32 s{sJOB}, 4\ns_cbranch_scc1 L_b_nojob")
sDT, sKS, sJRH = sL1, sL2, sL3
a(f"s_and_b32 s{sDT}, s{sBI}, 1\ns_lshr_b32 s{sKS}, s{sBI}, 1\ns_and_b32 s{sJRH}, s{sJOB}, 1")
jW, jX = 12, 13
JF = 16; JD = 48
a(f"v_lshrrev_b32 v{b0}, 4, v{vLANE}\nv_bfe_u32 v{b1}, v{vLANE}, 2, 2\nv_lshl_add_u32 v{b1}, v{b0}, 3, v{b1}\nv_mul_u32_u24 v{b1}, 48, v{b1}")
a(f"v_and_b32 v{b2}, 3, v{vLANE}\ns_cmp_eq_u32 s{sDT}, 0\ns_cselect_b32 s{sA}, 3, 0\ns_mov_b32 s{sB_}, {LDS_WK+32}\ns_cselect_b32 s{sB_}, {LDS_WK}, s{sB_}\nv_and_b32 v{b2}, s{sA}, v{b2}")
a(f"v_lshl_add_u32 v{jW}, v{b2}, 3, v{b1}\nv_add_u32 v{jW}, s{sB_}, v{jW}")
a(f"s_lshl_b32 s{sA}, s{sJRH}, 5\ns_lshl_b32 s{sB_}, s{sKS}, 4\ns_add_u32 s{sA}, s{sA}, s{sB_}\nv_and_b32 v{b1}, 15, v{vLANE}\nv_add_u32 v{b1}, s{sA}, v{b1}")
a(f"v_lshrrev_b32 v{b2}, 3, v{b1}\nv_mul_u32_u24 v{b2}, 9216, v{b2}\nv_and_b32 v{b3}, 7, v{b1}\nv_lshl_add_u32 v{b2}, v{b3}, 7, v{b2}")
a(f"v_bfe_u32 v{b3}, v{b1}, 1, 3\nv_xor_b32 v{b3}, v{b3}, v{b0}\nv_lshl_add_u32 v{jX}, v{b3}, 4, v{b2}\nv_xor_b32 v{b3}, 4, v{b3}\nv_lshl_add_u32 v{jX+1}, v{b3}, 4, v{b2}")
for i in range(4): a(f"v_mov_b32 v{JD+i}, 0")
lds_wait_ge(C_WK, 4)
lds_wait_ge(C_X, 8)
stamp(4)
def kvjob(isv):
    a.q_start()
    def rd(s):
        b = JF + 8 * (s % 4)
        a.ds(f"ds_read_b64_tr_b16 v[{b}:{b+1}], v{jW} offset:{s*1536}", ("A", s))
        a.ds(f"ds_read_b64_tr_b16 v[{b+2}:{b+3}], v{jW} offset:{s*1536 + 192}", ("A2", s))
        a.ds(f"ds_read_b128 v[{b+4}:{b+7}], v{jX + (s & 1)} offset:{LDS_X + (s >> 1)*1024}", ("B", s))
    for s in range(4): rd(s)
    for s in range(18):
        b = JF + 8 * (s % 4)
        a.need(("B", s))
        A, B = (b + 4, b) if isv else (b, b + 4)
        a(f"v_mfma_f32_16x16x32_bf16 v[{JD}:{JD+3}], v[{A}:{A+3}], v[{B}:{B+3}], v[{JD}:{JD+3}]")
        if s + 4 < 18: rd(s + 4)
    arrive(C_KVJ)
    a.nop(6)
a(f"s_mul_i32 s{sC}, s{sRB}, 5120")
a(f"s_cmp_ge_u32 s{sJOB}, 2\ns_cbranch_scc1 L_b_vjob")
kvjob(False)
a(f"v_mul_f32 v{b1}, v{JD}, v{JD}\nv_fmac_f32 v{b1}, v{JD+1}, v{JD+1}")
a(f"v_cvt_pk_bf16_f32 v{JD+4}, v{JD}, v{JD+1}\nv_cvt_pk_bf16_f32 v{JD+5}, v{JD+2}, v{JD+3}")
a(f"v_and_b32 v{b2}, 15, v{vLANE}\ns_lshl_b32 s{sA}, s{sKS}, 4\nv_add_u32 v{b2}, s{sA}, v{b2}\nv_lshlrev_b32 v{b2}, 4, v{b2}")
a(f"s_cmp_lg_u32 s{sDT}, 0\ns_cbranch_scc1 L_b_k1")
a(f"v_fmac_f32 v{b1}, v{JD+2}, v{JD+2}\nv_fmac_f32 v{b1}, v{JD+3}, v{JD+3}")
a(f"v_lshrrev_b32 v{b3}, 5, v{vLANE}\nv_lshl_add_u32 v{b2}, v{b3}, 9, v{b2}\nv_bfe_u32 v{b3}, v{vLANE}, 4, 1\nv_lshl_add_u32 v{b2}, v{b3}, 3, v{b2}")
a(f"s_lshl_b32 s{sA}, s{sJRH}, 10\ns_add_u32 s{sA}, s{sA}, s{sC}")
a(f"buffer_store_dwordx2 v[{JD+4}:{JD+5}], v{b2}, {srd(SWS)}, s{sA} offen sc1")
a(f"v_mov_b32 v{b3}, v{b1}\ns_nop 1\nv_permlane16_swap_b32 v{b1}, v{b3}\ns_nop 1\nv_add_f32 v{b1}, v{b1}, v{b3}")
a(f"v_mov_b32 v{b3}, v{b1}\ns_nop 1\nv_permlane32_swap_b32 v{b1}, v{b3}\ns_nop 1\nv_add_f32 v{b1}, v{b1}, v{b3}")
a(f"s_mov_b64 exec, 0xffff\nds_max_u32 v{vMISC}, v{b1} offset:{4*KN0}\ns_mov_b64 exec, -1\ns_branch L_b_jpub")
a.label("L_b_k1")
a(f"v_mov_b32 v{JD+5}, 0x3f803f80\ns_lshl_b32 s{sA}, s{sJRH}, 3\ns_add_u32 s{sA}, s{sA}, s{sC}\ns_add_u32 s{sA}, s{sA}, 4608")
a(f"s_mov_b64 exec, 0xffff\nbuffer_store_dwordx2 v[{JD+4}:{JD+5}], v{b2}, {srd(SWS)}, s{sA} offen sc1")
a(f"ds_max_u32 v{vMISC}, v{b1} offset:{4*KN1}\ns_mov_b64 exec, -1\ns_branch L_b_jpub")
a.label("L_b_vjob")
kvjob(True)
a(f"v_max3_f32 v{b1}, abs(v{JD}), abs(v{JD+1}), abs(v{JD+2})\nv_max_f32 v{b1}, v{b1}, abs(v{JD+3})")
a(f"v_cvt_pk_bf16_f32 v{JD+4}, v{JD}, v{JD+1}\nv_cvt_pk_bf16_f32 v{JD+5}, v{JD+2}, v{JD+3}")
a(f"v_and_b32 v{b2}, 15, v{vLANE}\nv_and_b32 v{b3}, 3, v{b2}\nv_bfe_u32 v{b4}, v{b2}, 2, 1\nv_lshl_add_u32 v{b3}, v{b4}, 3, v{b3}\nv_bfe_u32 v{b4}, v{b2}, 3, 1\nv_lshl_add_u32 v{b3}, v{b4}, 2, v{b3}")
a(f"s_mov_b64 s[{sE}:{sE+1}], -1\ns_mov_b64 s[{sG}:{sG+1}], -1")
a(f"s_cmp_eq_u32 s{sDT}, 0\ns_cbranch_scc1 L_b_v0")
a(f"v_add_u32 v{b3}, 16, v{b2}\nv_cmp_eq_u32 vcc, 2, v{b2}\nv_mov_b32 v{b4}, 0x3f803f80\ns_nop 0\nv_cndmask_b32 v{JD+4}, v{JD+4}, v{b4}, vcc\nv_cndmask_b32 v{JD+5}, v{JD+5}, v{b4}, vcc")
a(f"v_cmp_gt_u32 s[{sE}:{sE+1}], 3, v{b2}\nv_cmp_gt_u32 s[{sG}:{sG+1}], 2, v{b2}")
a.label("L_b_v0")
a(f"v_bfe_u32 v{b4}, v{vLANE}, 4, 1\nv_mul_u32_u24 v{b4}, 20, v{b4}\nv_add_u32 v{b3}, v{b3}, v{b4}\nv_lshlrev_b32 v{b3}, 4, v{b3}\nv_lshrrev_b32 v{b4}, 5, v{vLANE}\nv_lshl_add_u32 v{b3}, v{b4}, 3, v{b3}")
a(f"s_mul_i32 s{sA}, s{sJRH}, 1280\ns_mul_i32 s{sB_}, s{sKS}, 640\ns_add_u32 s{sA}, s{sA}, s{sB_}\ns_add_u32 s{sA}, s{sA}, s{sC}\ns_add_u32 s{sA}, s{sA}, 2048")
a(f"s_mov_b64 exec, s[{sE}:{sE+1}]\nbuffer_store_dwordx2 v[{JD+4}:{JD+5}], v{b3}, {srd(SWS)}, s{sA} offen sc1")
a(f"s_mov_b64 exec, s[{sG}:{sG+1}]\nds_max_u32 v{vMISC}, v{b1} offset:{4*KN0}\ns_mov_b64 exec, -1")
a.label("L_b_jpub")
get_nonce()
a(f"s_lshl_b32 s{sA}, s{sRB}, 2\ns_add_u32 s{sA}, s{sA}, s{sJOB}\ns_lshl_b32 s{sA}, s{sA}, 7\ns_add_u32 s{sA}, s{sA}, {FL_KV}")
a("s_waitcnt vmcnt(0) lgkmcnt(0)")
def kv_payload(v):
    a(f"ds_read_b32 v{v}, v{vMISC} offset:{4*KN0}\nds_read_b32 v{v+2}, v{vMISC} offset:{4*KN1}\ns_waitcnt lgkmcnt(0)\nv_add_f32 v{v}, v{v}, v{v+2}")
publish_last(C_KVP, 3, sA, 12, kv_payload)
stamp(5)
a.label("L_b_nojob")
get_nonce()
a(f"s_lshl_b32 s{sA}, s{sCB}, 5\ns_add_u32 s{sA}, s{sA}, s{sRB}\ns_lshl_b32 s{sA}, s{sA}, 7\ns_add_u32 s{sA}, s{sA}, {FL_B1}")
a("s_waitcnt vmcnt(0)")
publish_last(C_B1P, 3, sA, 12)
a(f"s_cmp_eq_u32 s{sBI}, 3\ns_cbranch_scc1 L_loader")

sNCH, sCH, sLB = sL1, sL2, sL3
a(f"s_and_b32 s{sA}, s{sRB}, 3\ns_lshl_b32 s{sB_}, s{sA}, 1\ns_add_u32 s{sB_}, s{sB_}, 1\ns_cmp_eq_u32 s{sA}, 0\ns_cselect_b32 s{sB_}, 0, s{sB_}\ns_cselect_b32 s{sNCH}, 3, 2")
a(f"s_lshr_b32 s{sA}, s{sRB}, 2\ns_mul_i32 s{sA}, s{sA}, 9\ns_add_u32 s{sCH}, s{sA}, s{sB_}\ns_mul_i32 s{sA}, s{sCB}, 72\ns_add_u32 s{sCH}, s{sCH}, s{sA}\ns_add_u32 s{sCH}, s{sCH}, s{sBI}")
QR = 100
mk_srd(SR2, pQ, 2359296)
mk_srd(SR3, pOUT, 4718592)
vB3Q, vB3O = 96, 97
a(f"s_lshl_b32 s{sA}, s{sRB}, 6\nv_add_u32 v{b0}, s{sA}, v{vLANE}\nv_mul_u32_u24 v{vB3Q}, 1152, v{b0}\nv_mul_u32_u24 v{vB3O}, 2304, v{b0}")
a(f"s_mul_i32 s{sL4}, s{sCB}, 144\ns_mul_i32 s{sA}, s{sBI}, 48\ns_add_u32 s{sL4}, s{sL4}, s{sA}")
for o in range(3):
    a(f"buffer_load_dwordx4 v[{QR+4*o}:{QR+4*o+3}], v{vB3Q}, {srd(SR2)}, s{sL4} offen offset:{16*o}")
a(f"s_cmp_ge_u32 s{sBI}, s{sNCH}\ns_cbranch_scc1 L_b3")
a(f"s_mul_i32 s{sLB}, s{sBI}, {CONV_SZ}")
a(f"s_lshl_b32 s{sA}, s{sCH}, 12\ns_add_u32 s{SR1}, s{pSK}, s{sA}\ns_addc_u32 s{SR1+1}, s{pSK+1}, 0\ns_mov_b32 s{SR1+2}, 4096\ns_mov_b32 s{SR1+3}, 0x20000")
mk_srd(SR4, pDD, 1152)
cF, cD, cZ = 12, 13, 16
a(f"v_bfe_u32 v{b0}, v{vLANE}, 3, 2\nv_and_b32 v{b1}, 7, v{vLANE}\nv_add_u32 v{b2}, v{b0}, v{b1}\nv_subrev_u32 v{b2}, 3, v{b2}\nv_lshlrev_b32 v{b3}, 1, v{b2}")
a(f"buffer_load_ushort v{cF}, v{b3}, {srd(SR1)}, 0 offen")
a(f"s_lshl_b32 s{sA}, s{sCH}, 1\nv_mov_b32 v{b3}, 0\nbuffer_load_ushort v{cD}, v{b3}, {srd(SR4)}, s{sA} offen")
a(f"v_mul_u32_u24 v{b4}, 4160, v{b0}\nv_lshl_add_u32 v{b4}, v{b1}, 1, v{b4}\nv_add_u32 v{b4}, 64, v{b4}\nv_add_u32 v{b4}, s{sLB}, v{b4}")
for i in range(4): a(f"v_mov_b32 v{cZ+i}, 0")
lds_wait_ge(C_Q2, 8)
a(f"s_cmp_ge_u32 s{sJOB}, 4\ns_cbranch_scc1 L_c_free")
lds_wait_ge(C_KVJ, 4)
a.label("L_c_free")
a(f"v_lshlrev_b32 v{b5}, 4, v{vLANE}")
for c_ in range(4):
    a(f"v_add_u32 v{b3}, {(2*c_ - 6) & 0xffffffff:#x}, v{b5}")
    for q in range(4):
        a(f"s_add_u32 m0, s{sLB}, {c_*4160 + 64}\ns_nop 0" if q == 0 else "")
        if q == 0:
            dma(b3, SR1, "0")
            a(f"v_add_u32 v{b3}, 1024, v{b3}\ns_add_u32 m0, s{sLB}, {c_*4160 + 64 + 1024}\ns_nop 0")
        else:
            dma(b3, SR1, "0", offset=1024*(q-1))
a(f"v_lshrrev_b32 v{b0}, 5, v{vLANE}\nv_mul_u32_u24 v{b0}, 1536, v{b0}\nv_and_b32 v{b1}, 31, v{vLANE}\nv_lshl_add_u32 v{b3}, v{b1}, 4, v{b0}\nv_add_u32 v{b3}, s{sLB}, v{b3}")
a(f"ds_write_b128 v{b3}, v[{cZ}:{cZ+3}] offset:{16640}\nds_write_b128 v{b3}, v[{cZ}:{cZ+3}] offset:{16640+3072}")
cAA, cAB = 14, 15
a(f"v_add_u32 v{cAB}, {16640 + 512 - 48}, v{b3}")
a(f"v_bfe_u32 v{b0}, v{vLANE}, 2, 2\nv_mul_u32_u24 v{b0}, 4160, v{b0}\nv_and_b32 v{b1}, 3, v{vLANE}\nv_lshl_add_u32 v{b0}, v{b1}, 4, v{b0}\nv_add_u32 v{b0}, s{sLB}, v{b0}")
a(f"s_mov_b64 exec, 0xffff\nds_write_b128 v{b0}, v[{cZ}:{cZ+3}]\ns_mov_b64 exec, -1")
a(f"v_and_b32 v{b0}, 3, v{vLANE}\nv_mul_u32_u24 v{b0}, 4160, v{b0}\nv_and_b32 v{b1}, 28, v{vLANE}\nv_lshl_add_u32 v{b0}, v{b1}, 1, v{b0}")
a(f"v_lshrrev_b32 v{b1}, 5, v{vLANE}\nv_lshlrev_b32 v{b1}, 4, v{b1}\nv_sub_u32 v{b0}, v{b0}, v{b1}\nv_add_u32 v{b0}, 24, v{b0}\nv_add_u32 v{cAA}, s{sLB}, v{b0}")
a(f"s_lshl_b32 s{sA}, s{sCB}, 12\ns_add_u32 s{sA}, s{sA}, {FL_B1}\nv_and_b32 v{b0}, 31, v{vLANE}\nv_lshlrev_b32 v{b0}, 7, v{b0}\nv_add_u32 v{b0}, s{sA}, v{b0}")
glob_poll(b0, b1, sleep=2)
stamp(6)
a(f"s_lshl_b32 s{sA}, s{sCH}, 12\ns_add_u32 s{sA}, s{sA}, {WS_U}")
for p in range(4):
    a(f"s_add_u32 m0, s{sLB}, {16640 + 512 + p*512}\ns_nop 0")
    dma(b5, SWS, f"s{sA}", offset=1024*p, sc1=True)
a(f"v_lshlrev_b32 v{cF}, 16, v{cF}\nv_lshlrev_b32 v{cD}, 16, v{cD}\nv_add_f32 v{cD}, v{cD}, v{cF}\nv_cmp_eq_u32 vcc, 0, v{b2}\ns_nop 1\nv_cndmask_b32 v{cF}, v{cF}, v{cD}, vcc")
a(f"v_cvt_pk_bf16_f32 v{cF}, v{cF}, v{cF}\ns_mov_b32 exec_hi, 0\nds_write_b16 v{b4}, v{cF}\ns_mov_b64 exec, -1")
Y0, Y1, CF = 32, 48, 64
for i in range(32): a(f"v_mov_b32 v{Y0+i}, 0")
a(f"s_mov_b32 s{sA}, 8\ns_waitcnt vmcnt(0) lgkmcnt(0)\ns_setprio 3")
a.label("L_conv")
for g in range(8):
    eps = g >> 1
    ao = 32 * g
    bo = 16 * (3 - eps) + (3072 if (g & 1) == 0 else 0)
    b = CF + 16 * (g & 1)
    a(f"ds_read_b64 v[{b}:{b+1}], v{cAA} offset:{ao}\nds_read_b64 v[{b+2}:{b+3}], v{cAA} offset:{ao+8}")
    a(f"ds_read_b128 v[{b+8}:{b+11}], v{cAB} offset:{bo}\nds_read_b128 v[{b+12}:{b+15}], v{cAB} offset:{bo+512}")
    a(f"ds_read_b64 v[{b+4}:{b+5}], v{cAA} offset:{ao+2048}\nds_read_b64 v[{b+6}:{b+7}], v{cAA} offset:{ao+2056}")
    a("s_waitcnt lgkmcnt(3)")
    a(f"v_mfma_f32_32x32x16_bf16 v[{Y0}:{Y0+15}], v[{b}:{b+3}], v[{b+8}:{b+11}], v[{Y0}:{Y0+15}]")
    a("s_waitcnt lgkmcnt(2)")
    a(f"v_mfma_f32_32x32x16_bf16 v[{Y1}:{Y1+15}], v[{b}:{b+3}], v[{b+12}:{b+15}], v[{Y1}:{Y1+15}]")
    a("s_waitcnt lgkmcnt(0)")
    a(f"v_mfma_f32_32x32x16_bf16 v[{Y1}:{Y1+15}], v[{b+4}:{b+7}], v[{b+8}:{b+11}], v[{Y1}:{Y1+15}]")
a(f"v_add_u32 v{cAA}, 256, v{cAA}\nv_subrev_u32 v{cAB}, 64, v{cAB}\ns_sub_u32 s{sA}, s{sA}, 1\ns_cmp_lg_u32 s{sA}, 0\ns_cbranch_scc1 L_conv")
arrive(C_CONV)
a.nop(10)
a(f"s_lshl_b32 s{sA}, s{sCH}, 12\ns_add_u32 s{sA}, s{sA}, {WS_W}")
for i in range(16): a(f"v_cvt_pk_bf16_f32 v{CF+i}, v{Y0+2*i}, v{Y0+2*i+1}")
a("s_nop 1")
for q in range(4):
    a(f"v_permlane32_swap_b32 v{CF+4*q}, v{CF+4*q+2}\nv_permlane32_swap_b32 v{CF+4*q+1}, v{CF+4*q+3}")
for q in range(4):
    a(f"buffer_store_dwordx4 v[{CF+4*q}:{CF+4*q+3}], v{b5}, {srd(SWS)}, s{sA} offen offset:{1024*q} sc1")
a(f"s_lshl_b32 s{sA}, s{sCB}, 5\ns_add_u32 s{sA}, s{sA}, s{sRB}\ns_lshl_b32 s{sA}, s{sA}, 7\ns_add_u32 s{sA}, s{sA}, {FL_CV}\ns_sub_u32 s{sB_}, s{sNCH}, 1")
a("s_waitcnt vmcnt(0)")
publish_last(C_CVP, f"s{sB_}", sA, 12)
stamp(7)
a.label("L_b3")
a(f"s_lshl_b32 s{sA}, s{sCB}, 12\ns_add_u32 s{sA}, s{sA}, {FL_CV}\nv_and_b32 v{b0}, 31, v{vLANE}\nv_lshlrev_b32 v{b0}, 7, v{b0}\nv_add_u32 v{b0}, s{sA}, v{b0}")
a(f"v_lshrrev_b32 v{b2}, 3, v{vLANE}\nv_lshlrev_b32 v{b2}, 12, v{b2}\nv_and_b32 v{b3}, 3, v{vLANE}\nv_lshl_add_u32 v{b2}, v{b3}, 9, v{b2}\nv_bfe_u32 v{b3}, v{vLANE}, 2, 1\nv_lshl_add_u32 v{b2}, v{b3}, 4, v{b2}")
a(f"s_mul_i32 s{sC}, s{sCB}, 72\ns_mul_i32 s{sA}, s{sBI}, 24\ns_add_u32 s{sC}, s{sC}, s{sA}\ns_lshl_b32 s{sC}, s{sC}, 12\ns_add_u32 s{sC}, s{sC}, {WS_W}")
a(f"s_lshr_b32 s{sA}, s{sRB}, 4\ns_lshl_b32 s{sA}, s{sA}, 11\ns_add_u32 s{sC}, s{sC}, s{sA}\ns_and_b32 s{sA}, s{sRB}, 15\ns_lshl_b32 s{sA}, s{sA}, 5\ns_add_u32 s{sC}, s{sC}, s{sA}")
a(f"s_mul_i32 s{sD}, s{sBI}, 3072\ns_add_u32 s{sD}, s{sD}, {LDS_B3}")
a(f"v_bfe_u32 v{b3}, v{vLANE}, 2, 2\nv_lshlrev_b32 v{b3}, 7, v{b3}\nv_lshrrev_b32 v{b4}, 4, v{vLANE}\nv_lshl_add_u32 v{b3}, v{b4}, 5, v{b3}\nv_and_b32 v{b4}, 3, v{vLANE}\nv_lshl_add_u32 v{b3}, v{b4}, 3, v{b3}\nv_add_u32 v{b3}, s{sD}, v{b3}")
a("s_setprio 0")
glob_poll(b0, b1, sleep=8)
stamp(8)
for q in range(3):
    a(f"s_add_u32 m0, s{sD}, {1024*q}\ns_nop 0")
    dma(b2, SWS, f"s{sC}", sc1=True)
    if q < 2: a(f"s_add_u32 s{sC}, s{sC}, {8*4096}")
a("s_waitcnt vmcnt(0)\ns_setprio 3")
W3 = 16
for q in range(6):
    a(f"ds_read_b64_tr_b16 v[{W3+2*q}:{W3+2*q+1}], v{b3} offset:{512*q}")
a("s_waitcnt lgkmcnt(0)")
U3 = 32
for i in range(12):
    a(f"v_lshlrev_b32 v{U3}, 16, v{W3+i}\nv_and_b32 v{U3+1}, 0xffff0000, v{W3+i}\nv_lshlrev_b32 v{U3+2}, 16, v{QR+i}\nv_and_b32 v{U3+3}, 0xffff0000, v{QR+i}")
    a(f"v_pk_mul_f32 v[{U3}:{U3+1}], v[{U3}:{U3+1}], v[{U3+2}:{U3+3}]\nv_cvt_pk_bf16_f32 v{W3+i}, v{U3}, v{U3+1}")
a(f"s_add_u32 s{sL4}, s{sL4}, 1152")
for o in range(3):
    a(f"buffer_store_dwordx4 v[{W3+4*o}:{W3+4*o+3}], v{vB3O}, {srd(SR3)}, s{sL4} offen offset:{16*o}")
stamp(9)
write_stamps_and_end()

a.label("L_loader")
lN, lSLOT, lEND, lNCH = sL1, sL2, sL3, sL4
lF, lMX, lLIN, lP = 12, 14, 15, 16
WM = 20; WT = 30
a("s_setprio 3")
a(f"s_and_b32 s{sA}, s{sRB}, 3\ns_cmp_eq_u32 s{sA}, 0\ns_cselect_b32 s{lNCH}, 3, 2")
a(f"v_and_b32 v{b0}, 15, v{vLANE}\nv_lshlrev_b32 v{b0}, 7, v{b0}\nv_add_u32 v{b0}, {FL_KV}, v{b0}\nv_mov_b32 v{lMX}, 0\nv_lshlrev_b32 v{lLIN}, 4, v{vLANE}")
a(f"v_and_b32 v{lP}, 7, v{vLANE}\nv_lshlrev_b32 v{lP}, 2, v{lP}\nv_add_u32 v{lP}, {LDS_MISC + 4*PROG}, v{lP}")
a(f"s_mov_b32 s{lN}, 0\ns_mov_b32 s{lSLOT}, {LDS_RING}\ns_mov_b32 s{lEND}, 8")
for i in range(9):
    a(f"v_add_u32 v{b1}, {64*i}, v{vLANE}\nv_mul_u32_u24 v{b2}, 7282, v{b1}\nv_lshrrev_b32 v{b2}, 16, v{b2}\nv_mul_u32_u24 v{b3}, 9, v{b2}\nv_sub_u32 v{b3}, v{b1}, v{b3}\nv_lshlrev_b32 v{b3}, 4, v{b3}")
    a(f"v_lshrrev_b32 v{b4}, 4, v{b2}\nv_lshl_add_u32 v{b4}, v{b4}, 1, v{b2}\nv_mul_u32_u24 v{b4}, 1152, v{b4}\nv_add_u32 v{WM+i}, v{b4}, v{b3}")
    a(f"v_and_b32 v{b4}, 1, v{b2}\nv_lshlrev_b32 v{b4}, 3, v{b4}\nv_mul_u32_u24 v{b5}, 9, v{b2}\nv_sub_u32 v{b5}, v{b5}, v{b4}\nv_add_u32 v{b5}, 16, v{b5}\nv_mul_u32_u24 v{b5}, 1152, v{b5}\nv_add_u32 v{WT+i}, v{b5}, v{b3}")
a.label("L_ld")
a(f"s_cmp_ge_u32 s{lN}, 8\ns_cbranch_scc1 L_ld_nopoll")
glob_poll(b0, lF, n=2)
a(f"v_max_f32 v{lMX}, v{lMX}, v{lF+1}\nv_add_u32 v{b0}, 2048, v{b0}")
a.label("L_ld_nopoll")
a(f"s_cmp_ge_u32 s{lN}, 3\ns_cbranch_scc1 L_ld_prog")
a(f"s_lshl_b32 s{sA}, s{lN}, 2\nv_add_u32 v{b1}, s{sA}, v{vMISC}")
Lq = a.newlabel("LQ");
a.label(Lq)
a(f"ds_read_b32 v{vT}, v{b1} offset:{4*C_Q0}\ns_waitcnt lgkmcnt(0)\nv_readfirstlane_b32 s{sT3}, v{vT}\ns_cmp_ge_u32 s{sT3}, 8\ns_cbranch_scc1 L_ld_go")
a(f"s_sub_u32 s{sBUD}, s{sBUD}, 1\ns_cselect_b32 s{sBUD}, 0, s{sBUD}\ns_cbranch_scc1 L_ld_go\ns_sleep 1\ns_branch {Lq}")
a.label("L_ld_prog")
a(f"s_sub_u32 s{sA}, s{lN}, 2")
Lq = a.newlabel("LP")
a.label(Lq)
a(f"ds_read_b32 v{vT}, v{lP}\ns_waitcnt lgkmcnt(0)\nv_cmp_gt_u32 vcc, s{sA}, v{vT}\ns_cbranch_vccz L_ld_go")
a(f"s_sub_u32 s{sBUD}, s{sBUD}, 1\ns_cselect_b32 s{sBUD}, 0, s{sBUD}\ns_cbranch_scc1 L_ld_go\ns_sleep 4\ns_branch {Lq}")
a.label("L_ld_go")
a(f"s_and_b32 s{sA}, s{lN}, 7\ns_mul_i32 s{sA}, s{sA}, {CHUNK}")
for g in range(5):
    a(f"s_add_u32 m0, s{lSLOT}, {4096*g}\ns_nop 0")
    for j in range(4):
        dma(lLIN, SWS, f"s{sA}", offset=1024*j, sc1=True)
    if g < 4: a(f"s_add_u32 s{sA}, s{sA}, 4096")
a(f"s_cmp_lg_u32 s{lN}, 7\ns_cbranch_scc1 L_ld_nochk")
a(f"ds_read_b32 v{b1}, v{vMISC} offset:{4*QN2}\nv_and_b32 v{b2}, 2, v{vLANE}\nv_cmp_eq_u32 vcc, 0, v{b2}\ns_waitcnt lgkmcnt(0)")
a(f"v_mul_f32 v{b1}, v{b1}, v{lMX}\nv_mov_b32 v{b2}, {fbits(2.0**60):#x}\nv_mov_b32 v{b3}, {fbits(1500.0):#x}")
a(f"v_cndmask_b32 v{b1}, v{lMX}, v{b1}, vcc\nv_cndmask_b32 v{b2}, v{b2}, v{b3}, vcc\ns_nop 0\nv_cmp_nle_f32 vcc, v{b1}, v{b2}")
if FORCE_FB:
    a("s_mov_b64 vcc, -1")
a(f"s_cbranch_vccz L_ld_nochk\ns_mov_b32 s{lEND}, 24\nds_write_b32 v{vMISC}, v{vONE} offset:{4*FB}")
a.label("L_ld_nochk")
a(f"s_add_u32 s{lN}, s{lN}, 1\nv_mov_b32 v{b1}, s{lN}\ns_waitcnt vmcnt(0) lgkmcnt(0)\nds_write_b32 v{vMISC}, v{b1} offset:{4*KV_READY}")
if STAMPS:
    a(f"s_cmp_lg_u32 s{lN}, 1\ns_cbranch_scc1 L_ld_ns"); stamp(6); a.label("L_ld_ns")
a(f"s_add_u32 s{lSLOT}, s{lSLOT}, {CHUNK}\ns_cmp_eq_u32 s{lSLOT}, {LDS_RING + 3*CHUNK}\ns_cselect_b32 s{lSLOT}, {LDS_RING}, s{lSLOT}")
a(f"s_cmp_lt_u32 s{lN}, s{lEND}\ns_cbranch_scc1 L_ld")
stamp(7)
lds_wait_ge(C_CONV, f"s{lNCH}", sleep=4)
mk_srd(SR1, pWO, 663552)
a(f"s_mul_i32 s{sA}, s{sCB}, 144\ns_mov_b32 s{sB_}, {LDS_X}\ns_mov_b32 s{sC}, 8")
a.label("L_wo")
for i in range(9):
    a(f"s_add_u32 m0, s{sB_}, {1024*i}\ns_nop 0")
    dma(WM + i, SR1, f"s{sA}")
a(f"s_add_u32 s{sA}, s{sA}, {72*1152}\ns_add_u32 s{sB_}, s{sB_}, 9216\ns_waitcnt vmcnt(36)\ns_sub_u32 s{sC}, s{sC}, 1\ns_cmp_lg_u32 s{sC}, 0\ns_cbranch_scc1 L_wo")
a(f"s_mul_i32 s{sA}, s{sCB}, 144")
for i in range(9):
    a(f"s_mov_b32 m0, {LDS_WOT + 1024*i}\ns_nop 0")
    dma(WT + i, SR1, f"s{sA}")
a(f"s_waitcnt vmcnt(0)\nds_write_b32 v{vMISC}, v{vONE} offset:{4*WO_READY}\ns_waitcnt lgkmcnt(0)")
stamp(8)
write_stamps_and_end()
a.label("L_exit")
a("s_endpgm")

probs = check(a.lines)
for p in probs: print("HAZARD", p, file=sys.stderr)
hdr = open("cdna_kernels/" + NAME + ".s.ref").read().split("; Override launch geometry")[0]
out = hdr + f"; Generated by gen/gen.py (hand-written generator). One persistent launch, 256 workgroups x 12 waves.\n; @launch grid=(256,1,1) block=(768,1,1) lds={LDS_TOTAL}\n"
out += f'.amdgcn_target "amdgcn-amd-amdhsa--gfx950"\n.text\n.globl {NAME}_kernel\n.p2align 8\n.type {NAME}_kernel,@function\n{NAME}_kernel:\n'
out += a.text()
out += f""".section .rodata,"a"
.p2align 6
.amdhsa_kernel {NAME}_kernel
  .amdhsa_next_free_vgpr 168
  .amdhsa_next_free_sgpr 102
  .amdhsa_accum_offset 168
  .amdhsa_group_segment_fixed_size 0
  .amdhsa_kernarg_size 112
  .amdhsa_user_sgpr_count 2
  .amdhsa_user_sgpr_kernarg_segment_ptr 1
  .amdhsa_system_sgpr_workgroup_id_x 1
.end_amdhsa_kernel
"""
dst = [x for x in sys.argv[1:] if not x.startswith("--")]
open(dst[0] if dst else "cdna_kernels/" + NAME + ".s", "w").write(out)
```
